```python
import torch

def _softmax(x, axis=-1):
    return torch.softmax(x, dim=axis)
def _gelu(x):
    return torch.nn.functional.gelu(x, approximate="tanh")
def _silu(x):
    return torch.nn.functional.silu(x)
def _sigmoid(x):
    return torch.sigmoid(x)
def _layernorm(x, axis=-1, eps=1e-5):
    m = x.mean(dim=axis, keepdim=True)
    v = x.var(dim=axis, keepdim=True, unbiased=False)
    return (x - m) / torch.sqrt(v + eps)
def _scatter_add(tgt, idx, src, axis=0):
    return tgt.clone().index_add_(axis, idx, src)
def _segment_sum(src, seg, n):
    out = torch.zeros((n,) + src.shape[1:], dtype=src.dtype)
    return out.index_add_(0, seg, src)
def _pad(x, pw):
    flat = tuple(v for pair in reversed(pw) for v in pair)
    return torch.nn.functional.pad(x, flat)

kernel_name = 'recurrent_scan__sliding_local_dilated__glu_gated_glu__prompt'

def setup_inputs():

    _w = (lambda a: (lambda t: t.to(torch.bfloat16) if t.is_floating_point() else t)(torch.as_tensor(a)))
    def _A_setup():
        B, S, D = 1, 2048, 512
        return {
            "x": _w((lambda *s: torch.randn(*s, dtype=torch.bfloat16) * 0.05)(B, S, D)),
            "wqkv": _w((lambda *s: torch.randn(*s, dtype=torch.bfloat16) * 0.05)(D, 3 * D)),
            "wo": _w((lambda *s: torch.randn(*s, dtype=torch.bfloat16) * 0.05)(D, D)),
        }
    _A_in = _A_setup()

    def _B_setup():
        B, S, D, F = 1, 2048, 512, 1792
        return {
            "x": _w((lambda *s: torch.randn(*s, dtype=torch.bfloat16) * 0.05)(B, S, D)),
            "w_gate": _w((lambda *s: torch.randn(*s, dtype=torch.bfloat16) * 0.05)(D, F)),
            "w_up": _w((lambda *s: torch.randn(*s, dtype=torch.bfloat16) * 0.05)(D, F)),
            "w_down": _w((lambda *s: torch.randn(*s, dtype=torch.bfloat16) * 0.05)(F, D)),
        }
    _B_in = _B_setup()

    return {
        "A_x": _A_in["x"],
        "A_wqkv": _A_in["wqkv"],
        "A_wo": _A_in["wo"],
        "B_x": _B_in["x"],
        "B_w_gate": _B_in["w_gate"],
        "B_w_up": _B_in["w_up"],
        "B_w_down": _B_in["w_down"],
    }

def reference(A_x, A_wqkv, A_wo, B_x, B_w_gate, B_w_up, B_w_down):
    def _A_ref(x, wqkv, wo):
        B, S, D = x.shape
        H = 32; Dh = D // H
        W, dil = 8, 2
        qkv = (lambda x, *d: x.permute(*d))((x @ wqkv).reshape(B, S, 3, H, Dh), 2, 0, 3, 1, 4)
        q, k, v = qkv[0], qkv[1], qkv[2]
        scale = Dh ** -0.5
        pos = torch.arange(S)
        off = torch.arange(W) * dil
        idx = pos[:, None] - off[None, :]
        mask = idx >= 0
        idx_c = torch.where(mask, idx, 0).reshape(-1)
        kg = k[:, :, idx_c, :].reshape(B, H, S, W, Dh)
        vg = v[:, :, idx_c, :].reshape(B, H, S, W, Dh)
        logits = torch.einsum("bhsd,bhswd->bhsw", q, kg) * scale
        logits = torch.where(mask[None, None, :, :], logits, -1e9)
        attn = _softmax(logits, axis=-1)
        o = torch.einsum("bhsw,bhswd->bhsd", attn, vg)
        return (lambda x, *d: x.permute(*d))(o, 0, 2, 1, 3).reshape(B, S, D) @ wo

    def _B_ref(x, w_gate, w_up, w_down):
        g = torch.einsum("bsd,df->bsf", x, w_gate)
        u = torch.einsum("bsd,df->bsf", x, w_up)
        h = _sigmoid(g) * u
        return torch.einsum("bsf,fd->bsd", h, w_down)

    x = A_x
    xn = _layernorm(x, axis=-1)
    s = _A_ref(xn, A_wqkv, A_wo)
    g = _silu(_B_ref(xn, B_w_gate, B_w_up, B_w_down))
    return x + s * g
```

```python
import sys
from gen import *

NS = 10
NR = 19
RED_STRIDE = 272
RED_PART = 64 * RED_STRIDE

P_SRD_W = 8; P_SRD_A = 12; P_SRD_O = 16; P_SRD_X = 4
P_RT = 28; P_CT = 29; P_KQ = 30; P_CH = 31
P_CNT = 32; P_POS = 33; P_N = 34; P_WOFF = 35; P_AOFF = 36; P_M0B = 37; P_ROT = 38
P_WB = 39; P_AB = 40; P_OFF = 45


def gen_k2(a):
    k = "p2_kernel"
    a(f".globl {k}\n.p2align 8\n.type {k},@function\n{k}:")
    a("s_cmp_ge_u32 s2, 256\ns_cbranch_scc1 L_p2_done")
    a(f"s_load_dwordx16 s[{S_PTR}:{S_PTR+15}], s[0:1], 0")
    a(f"s_load_dwordx4 s[{S_PTR+16}:{S_PTR+19}], s[0:1], 64")
    a(f"v_lshrrev_b32 v1, 6, v0\ns_nop 0\nv_readfirstlane_b32 s{S_WAVE}, v1")
    a(f"s_and_b32 s{S_T0}, s2, 7\ns_lshl_b32 s{S_T0}, s{S_T0}, 2\ns_lshr_b32 s{S_T1}, s2, 6\ns_add_u32 s{P_RT}, s{S_T0}, s{S_T1}")
    a(f"s_bfe_u32 s{P_CT}, s2, 0x30003")
    a(f"s_lshr_b32 s{P_KQ}, s{S_WAVE}, 1\ns_and_b32 s{P_CH}, s{S_WAVE}, 1")
    V = VAlloc(1)
    lane = V.get(); g = V.get(); t = V.get()
    tmp = [V.get() for _ in range(8)]
    a(f"v_and_b32 v{lane}, 63, v0\nv_lshrrev_b32 v{g}, 4, v{lane}\nv_and_b32 v{t}, 15, v{lane}")
    a(f"s_mov_b32 s{P_CNT}, 19\ns_cmp_eq_u32 s{P_KQ}, 0\ns_cselect_b32 s{P_CNT}, 16, s{P_CNT}\ns_cmp_eq_u32 s{P_KQ}, 3\ns_cselect_b32 s{P_CNT}, 18, s{P_CNT}")
    a(f"s_mul_i32 s{S_T0}, s{P_KQ}, 19\ns_sub_u32 s{S_T0}, s{S_T0}, 3\ns_cmp_eq_u32 s{P_KQ}, 0\ns_cselect_b32 s{S_T0}, 0, s{S_T0}")
    a(f"s_sub_u32 s{S_T1}, s{S_T0}, 16\ns_cselect_b32 s{S_T1}, 0, s{S_T1}")
    a(f"s_lshl_b32 s{P_WB}, s{S_T1}, 15")
    a(f"s_mul_i32 s{P_AB}, s{P_RT}, {A2_TILE}\ns_lshl_b32 s{S_T0}, s{S_T0}, 12\ns_add_u32 s{P_AB}, s{P_AB}, s{S_T0}")
    a(f"s_mul_i32 s{P_ROT}, s{P_CT}, s{P_CNT}\ns_lshr_b32 s{P_ROT}, s{P_ROT}, 3")
    a(f"s_lshl_b32 s{P_M0B}, s{S_WAVE}, 11")
    vW = V.get(); vW1 = V.get(); vA = V.get()
    a(f"v_lshrrev_b32 v{tmp[0]}, 3, v{lane}")
    a(f"v_and_b32 v{tmp[1]}, 6, v{tmp[0]}")
    a(f"v_and_b32 v{tmp[2]}, 7, v{lane}")
    a(f"v_xor_b32 v{tmp[1]}, v{tmp[1]}, v{tmp[2]}")
    a(f"v_lshlrev_b32 v{tmp[1]}, 4, v{tmp[1]}")
    a(f"v_lshl_add_u32 v{vW}, v{tmp[0]}, 10, v{tmp[1]}")
    a(f"s_lshl_b32 s{S_T0}, s{P_CH}, 14\ns_lshl_b32 s{S_T1}, s{P_CT}, 7\ns_add_u32 s{S_T0}, s{S_T0}, s{S_T1}")
    a(f"v_add_u32 v{vW}, s{S_T0}, v{vW}")
    a(f"v_add_u32 v{vW1}, 8192, v{vW}")
    a(f"s_lshl_b32 s{S_T0}, s{P_CH}, 11")
    a(f"v_lshlrev_b32 v{vA}, 4, v{lane}\nv_add_u32 v{vA}, s{S_T0}, v{vA}")
    vO = V.get()
    a(f"v_lshrrev_b32 v{tmp[0]}, 3, v0\nv_and_b32 v{tmp[1]}, 7, v0")
    a(f"v_lshlrev_b32 v{vO}, 10, v{tmp[0]}\nv_lshl_add_u32 v{vO}, v{tmp[1]}, 4, v{vO}")
    a(f"s_lshl_b32 s{S_T0}, s{P_RT}, 16\ns_lshl_b32 s{S_T1}, s{P_CT}, 7\ns_add_u32 s{S_T0}, s{S_T0}, s{S_T1}")
    a(f"v_add_u32 v{vO}, s{S_T0}, v{vO}")
    vR = V.get()
    a(f"v_mul_u32_u24 v{vR}, {RED_STRIDE}, v{tmp[0]}\nv_lshl_add_u32 v{vR}, v{tmp[1]}, 5, v{vR}")
    a("s_waitcnt lgkmcnt(0)")
    srd(a, P_SRD_X, S_PTR + 0, 2048 * 1024)
    srd(a, P_SRD_A, S_PTR + 18, 32 * A2_TILE)
    srd(a, P_SRD_O, S_PTR + 14, 2048 * 1024)
    a(f"s_cmp_eq_u32 s{P_KQ}, 0")
    a(f"s_cselect_b32 s{P_SRD_W}, s{S_PTR+4}, s{S_PTR+12}\ns_cselect_b32 s{P_SRD_W+1}, s{S_PTR+5}, s{S_PTR+13}")
    a(f"s_cselect_b32 s{P_SRD_W+2}, 2, 7\ns_lshl_b32 s{P_SRD_W+2}, s{P_SRD_W+2}, 18\ns_and_b32 s{P_SRD_W+1}, s{P_SRD_W+1}, 0xffff\ns_mov_b32 s{P_SRD_W+3}, 0x20000")
    X4 = V.get(4, 4)
    a(f"buffer_load_dwordx4 {vr(X4, 4)}, v{vO}, s[{P_SRD_X}:{P_SRD_X+3}], 0 offen")
    a(f"s_mov_b32 s{P_POS}, s{P_ROT}")

    def dma(rho):
        n = rho % NR
        isW = rho < NR
        out = []
        if rho == NR:
            out.append(f"s_mov_b32 s{P_POS}, s{P_ROT}")
        sh = 15 if isW else 12
        base = P_WB if isW else P_AB
        out.append(f"s_lshl_b32 s{P_OFF}, s{P_POS}, {sh}\ns_add_u32 s{P_OFF}, s{P_OFF}, s{base}")
        if n >= 16:
            out.append(f"s_cmp_gt_u32 s{P_CNT}, {n}\ns_cselect_b32 s{P_OFF}, s{P_OFF}, 0x4000000")
        slot = (rho % NS) * 16384
        out.append(f"s_add_u32 m0, s{P_M0B}, {slot}")
        out.append(f"s_add_u32 s{P_POS}, s{P_POS}, 1")
        if isW:
            out.append(f"buffer_load_dwordx4 v{vW}, s[{P_SRD_W}:{P_SRD_W+3}], s{P_OFF} offen lds")
            out.append(f"s_add_u32 m0, s{P_M0B}, {slot + 1024}")
            out.append(f"s_cmp_ge_u32 s{P_POS}, s{P_CNT}")
            out.append(f"buffer_load_dwordx4 v{vW1}, s[{P_SRD_W}:{P_SRD_W+3}], s{P_OFF} offen lds")
        else:
            out.append(f"buffer_load_dwordx4 v{vA}, s[{P_SRD_A}:{P_SRD_A+3}], s{P_OFF} offen lds")
            out.append(f"s_cmp_ge_u32 s{P_POS}, s{P_CNT}")
            out.append(f"buffer_load_dwordx4 v{vA}, s[{P_SRD_A}:{P_SRD_A+3}], s{P_OFF} offen offset:1024 lds")
        out.append(f"s_cselect_b32 s{P_POS}, 0, s{P_POS}")
        return "\n".join(out)
    for rho in range(NS):
        a(dma(rho))
    r8 = tmp[0]
    a(f"v_and_b32 v{r8}, 1, v{g}\nv_lshlrev_b32 v{r8}, 2, v{r8}\nv_lshrrev_b32 v{tmp[1]}, 2, v{t}\nv_add_u32 v{r8}, v{r8}, v{tmp[1]}")
    a(f"v_lshrrev_b32 v{tmp[1]}, 1, v{g}\nv_lshlrev_b32 v{tmp[1]}, 11, v{tmp[1]}")
    a(f"v_lshl_add_u32 v{tmp[1]}, v{r8}, 7, v{tmp[1]}")
    a(f"v_and_b32 v{tmp[2]}, 3, v{t}\nv_lshl_add_u32 v{tmp[1]}, v{tmp[2]}, 3, v{tmp[1]}")
    a(f"s_lshl_b32 s{S_T0}, s{P_KQ}, 12")
    a(f"v_add_u32 v{tmp[1]}, s{S_T0}, v{tmp[1]}")
    a(f"v_lshrrev_b32 v{tmp[2]}, 1, v{r8}")
    a(f"s_lshl_b32 s{S_T1}, s{P_CH}, 1")
    a(f"v_xor_b32 v{tmp[2]}, s{S_T1}, v{tmp[2]}")
    wa = [V.get(), V.get()]
    a(f"v_lshl_add_u32 v{wa[0]}, v{tmp[2]}, 5, v{tmp[1]}")
    a(f"v_xor_b32 v{wa[1]}, 32, v{wa[0]}")
    ta = V.get()
    a(f"v_lshlrev_b32 v{ta}, 4, v{lane}\nv_add_u32 v{ta}, s{S_T0}, v{ta}")
    WF = [[V.get(4, 4) for _ in range(2)] for _ in range(NR)]
    TF = [[V.get(4, 4) for _ in range(4)] for _ in range(2)]
    acc = [[V.get(4, 4) for _ in range(4)] for _ in range(2)]
    for cb in range(2):
        for tb in range(4):
            for r in range(4):
                a(f"v_mov_b32 v{acc[cb][tb]+r}, 0")
    cur_base = {"w": 0, "t": 0}
    def fix_base(kind, slot):
        want = (slot // 4) * 4
        d = (want - cur_base[kind]) * 16384
        if d:
            for r in (wa if kind == "w" else [ta]):
                a(f"v_add_u32 v{r}, {d & 0xffffffff:#x}, v{r}")
            cur_base[kind] = want
        return (slot - want) * 16384
    def mf(n):
        return [f"v_mfma_f32_16x16x32_bf16 {vr(acc[cb][tb], 4)}, {vr(WF[n][cb], 4)}, {vr(TF[n & 1][tb], 4)}, {vr(acc[cb][tb], 4)}"
                for tb in range(4) for cb in range(2)]
    TOT = 2 * NR
    last_issued = NS - 1
    for rho in range(TOT):
        slot = rho % NS
        off = fix_base("w" if rho < NR else "t", slot)
        nv = 2 * (last_issued - rho)
        a(f"s_waitcnt vmcnt({nv}) lgkmcnt(0)\ns_barrier")
        rd = []
        if rho < NR:
            for cb in range(2):
                rd.append(f"ds_read_b64_tr_b16 {vr(WF[rho][cb], 2)}, v{wa[cb]} offset:{off}")
                rd.append(f"ds_read_b64_tr_b16 {vr(WF[rho][cb] + 2, 2)}, v{wa[cb]} offset:{off + 1024}")
        else:
            n = rho - NR
            for tb in range(4):
                rd.append(f"ds_read_b128 {vr(TF[n & 1][tb], 4)}, v{ta} offset:{off + tb * 1024}")
        for ins in rd: a(ins)
        nxt = rho - 1 + NS
        d = None
        if rho >= 1 and nxt < TOT:
            d = dma(nxt); last_issued = nxt
        if rho > NR:
            M = mf(rho - NR - 1)
            for ins in M[:2]: a(ins)
            if d: a(d)
            for ins in M[2:]: a(ins)
        elif d:
            a(d)
    a("s_waitcnt lgkmcnt(0)\ns_barrier")
    for ins in mf(NR - 1): a(ins)
    wr = tmp[0]
    a(f"v_mul_u32_u24 v{wr}, {RED_STRIDE}, v{t}\nv_lshl_add_u32 v{wr}, v{g}, 4, v{wr}")
    a(f"s_mul_i32 s{S_T0}, s{P_KQ}, {RED_PART}\ns_lshl_b32 s{S_T1}, s{P_CH}, 7\ns_add_u32 s{S_T0}, s{S_T0}, s{S_T1}")
    a(f"v_add_u32 v{wr}, s{S_T0}, v{wr}")
    a("s_nop 7")
    for tb in range(4):
        for cb in range(2):
            a(f"ds_write_b128 v{wr}, {vr(acc[cb][tb], 4)} offset:{tb * 16 * RED_STRIDE + cb * 64}")
    a("s_waitcnt lgkmcnt(0)\ns_barrier")
    R = WF[0][0]
    for p in range(4):
        a(f"ds_read_b128 {vr(R + 8 * p, 4)}, v{vR} offset:{p * RED_PART}")
        a(f"ds_read_b128 {vr(R + 8 * p + 4, 4)}, v{vR} offset:{p * RED_PART + 16}")
    a("s_waitcnt lgkmcnt(0) vmcnt(0)")
    S_ = R; D = R + 8; E = R + 16; Xf = R + 24
    for i in range(8): a(f"v_add_f32 v{D+i}, v{D+i}, v{R+16+i}")
    for i in range(8): a(f"v_add_f32 v{D+i}, v{D+i}, v{R+24+i}")
    def rnd8(base):
        for i in range(0, 8, 2):
            a(f"v_cvt_pk_bf16_f32 v{base+i}, v{base+i}, v{base+i+1}")
        for i in range(0, 8, 2):
            a(f"v_and_b32 v{base+i+1}, 0xffff0000, v{base+i}\nv_lshlrev_b32 v{base+i}, 16, v{base+i}")
    rnd8(D); rnd8(S_)
    for i in range(8): a(f"v_mul_f32 v{E+i}, {f2u(-LOG2E):#x}, v{D+i}")
    for i in range(8): a(f"v_exp_f32 v{E+i}, v{E+i}")
    for i in range(4):
        a(f"v_lshlrev_b32 v{Xf+2*i}, 16, v{X4+i}\nv_and_b32 v{Xf+2*i+1}, 0xffff0000, v{X4+i}")
    for i in range(8): a(f"v_add_f32 v{E+i}, 1.0, v{E+i}")
    for i in range(8): a(f"v_rcp_f32 v{E+i}, v{E+i}")
    a("s_nop 0")
    for i in range(8): a(f"v_mul_f32 v{D+i}, v{D+i}, v{E+i}")
    rnd8(D)
    for i in range(8): a(f"v_mul_f32 v{D+i}, v{D+i}, v{S_+i}")
    rnd8(D)
    for i in range(8): a(f"v_add_f32 v{D+i}, v{D+i}, v{Xf+i}")
    for i in range(4): a(f"v_cvt_pk_bf16_f32 v{S_+i}, v{D+2*i}, v{D+2*i+1}")
    a(f"buffer_store_dwordx4 {vr(S_, 4)}, v{vO}, s[{P_SRD_O}:{P_SRD_O+3}], 0 offen")
    a.label("L_p2_done")
    a("s_endpgm")
    print(f"prog P2: vgprs {V.hi}", file=sys.stderr)
    return k, V.hi
```

```python
import sys

NAME = "recurrent_scan__sliding_local_dilated__glu_gated_glu__prompt"

class Asm:
    def __init__(self):
        self.L = []
    def __call__(self, s):
        for line in s.split("\n"):
            self.L.append(line)
    def label(self, n):
        self.L.append(n + ":")
    def text(self):
        return "\n".join(self.L) + "\n"

def vr(a, n=1):
    return f"v{a}" if n == 1 else f"v[{a}:{a+n-1}]"
def sr(a, n=1):
    return f"s{a}" if n == 1 else f"s[{a}:{a+n-1}]"

class VAlloc:
    def __init__(self, start=0, limit=256):
        self.p = start; self.limit = limit; self.hi = start
    def get(self, n=1, align=None):
        if align is None:
            align = 1 if n == 1 else 2
        self.p = (self.p + align - 1) // align * align
        r = self.p
        self.p += n
        self.hi = max(self.hi, self.p)
        assert self.p <= self.limit, f"out of VGPRs {self.p}"
        return r

def interleave(main, fillers):
    out = []
    n = len(main); m = len(fillers)
    k = 0
    for i, ins in enumerate(main):
        out.append(ins)
        tgt = (m * (i + 1)) // n
        while k < tgt:
            out.append(fillers[k]); k += 1
    while k < m:
        out.append(fillers[k]); k += 1
    return out

WSLOT = 20480
NW = 5
XBASE = WSLOT * NW
XSLOT = 18432
NX = 3
MISC = XBASE + XSLOT * NX
ST4 = MISC
STR = MISC + 2304
STMR = STR + 576
CSA = STMR + 576
LDS_TOTAL = 163840
A2_TILE = 72 * 4096
LOG2E = 1.4426950408889634

import struct
def f2u(x):
    return struct.unpack("<I", struct.pack("<f", x))[0]

S_WAVE = 3
SRD_X = 4; SRD_QKV = 8; SRD_G = 12; SRD_U = 16; SRD_H = 20; SRD_WS = 24
S_I = 28
S_J = 29
S_C = 30
S_K3072 = 31; S_K3584 = 32; S_KX = 33
S_WFILL = 34
S_XFILL = 35
S_WRC = 36
S_XRC = 37
S_DW = 38; S_DX = 39
S_IT = 40
S_T0 = 41; S_T1 = 42; S_T2 = 43; S_T3 = 44
S_WFC = 45; S_XFC = 46
S_FO = 47; S_HO = 48
S_XHFILL = 49
S_M0 = 50
S_EX = 58
S_OB = 60
S_OB2 = 61
S_BIAS = 62
S_PTR = 64


def srd(a, d, p, nbytes):
    a(f"s_mov_b32 s{d}, s{p}\ns_and_b32 s{d+1}, s{p+1}, 0xffff\ns_mov_b32 s{d+2}, {nbytes}\ns_mov_b32 s{d+3}, 0x20000")


def ring_adv(cnt, n, step, delta, size):
    return [f"s_cmp_ge_u32 s{cnt}, {n - step}",
            f"s_cselect_b32 s{delta}, {step - n}, {step}",
            f"s_add_i32 s{cnt}, s{cnt}, s{delta}",
            f"s_mul_i32 s{delta}, s{delta}, {size}"]


def rnd_bf16(a, d, s):
    a(f"v_cvt_pk_bf16_f32 v{d}, v{s}, v{s}")
    a(f"v_lshlrev_b32 v{d}, 16, v{d}")


class Prog:
    def __init__(self, a, kind, th):
        self.a = a; self.kind = kind; self.th = th
        self.typeA = kind in ("H", "FA")
        self.name = f"{kind}{th}"
        self.hw = 0 if kind == "H" else (1 if kind == "FA" else th)

    def build(self):
        a = self.a; kind = self.kind; th = self.th; hw = self.hw
        V = VAlloc(1)
        lane = V.get(); g = V.get(); t = V.get()
        tmp = [V.get() for _ in range(8)]
        self.lane, self.g, self.t, self.tmp = lane, g, t, tmp
        a.label(f"L_{self.name}")
        a(f"v_and_b32 v{lane}, 63, v0")
        a(f"v_lshrrev_b32 v{g}, 4, v{lane}")
        a(f"v_and_b32 v{t}, 15, v{lane}")
        r8 = tmp[0]; p8 = tmp[1]; sw = tmp[2]
        a(f"v_lshrrev_b32 v{r8}, 3, v{lane}")
        a(f"v_and_b32 v{p8}, 7, v{lane}")
        a(f"v_and_b32 v{sw}, 2, v{r8}")
        a(f"s_and_b32 s{S_T0}, s{S_C}, 1\ns_lshl_b32 s{S_T0}, s{S_T0}, 2")
        a(f"v_or_b32 v{sw}, s{S_T0}, v{sw}")
        a(f"v_xor_b32 v{sw}, v{sw}, v{p8}")
        a(f"v_lshlrev_b32 v{sw}, 4, v{sw}")
        row = tmp[3]
        a(f"s_lshl_b32 s{S_T0}, s{S_C}, 3")
        a(f"v_add_u32 v{row}, s{S_T0}, v{r8}")
        vW3584 = V.get()
        a(f"v_mul_u32_u24 v{vW3584}, 3584, v{row}")
        a(f"v_add_u32 v{vW3584}, v{vW3584}, v{sw}")
        a(f"v_add_u32 v{vW3584}, s{S_FO}, v{vW3584}")
        vW2 = V.get()
        if self.typeA:
            a(f"v_mul_u32_u24 v{vW2}, 3072, v{row}")
            a(f"v_add_u32 v{vW2}, v{vW2}, v{sw}")
            a(f"v_add_u32 v{vW2}, s{S_FO}, v{vW2}")
        else:
            a(f"v_lshrrev_b32 v{tmp[4]}, 2, v{lane}")
            a(f"v_lshrrev_b32 v{tmp[5]}, 4, v{lane}")
            a(f"v_and_b32 v{tmp[5]}, 2, v{tmp[5]}")
            a(f"v_and_b32 v{tmp[6]}, 3, v{lane}")
            a(f"v_xor_b32 v{tmp[5]}, v{tmp[5]}, v{tmp[6]}")
            a(f"v_lshlrev_b32 v{tmp[5]}, 4, v{tmp[5]}")
            a(f"s_and_b32 s{S_T0}, s{S_C}, 1\ns_lshl_b32 s{S_T0}, s{S_T0}, 4")
            a(f"v_add_u32 v{tmp[4]}, s{S_T0}, v{tmp[4]}")
            a(f"v_mul_u32_u24 v{vW2}, 3584, v{tmp[4]}")
            a(f"v_add_u32 v{vW2}, v{vW2}, v{tmp[5]}")
            a(f"v_add_u32 v{vW2}, s{S_HO}, v{vW2}")
        vX0 = V.get(); vX1 = V.get()
        a(f"v_lshrrev_b32 v{tmp[4]}, 1, v{r8}")
        a(f"v_xor_b32 v{tmp[4]}, v{tmp[4]}, v{p8}")
        a(f"v_lshlrev_b32 v{tmp[4]}, 4, v{tmp[4]}")
        a(f"v_lshl_add_u32 v{tmp[4]}, v{r8}, 10, v{tmp[4]}")
        a(f"v_xor_b32 v{tmp[5]}, 64, v{tmp[4]}")
        a(f"v_add_u32 v{tmp[5]}, 8192, v{tmp[5]}")
        a(f"s_lshl_b32 s{S_T0}, s{S_I}, 17\ns_lshl_b32 s{S_T1}, s{S_WAVE}, 14\ns_add_u32 s{S_T0}, s{S_T0}, s{S_T1}")
        a(f"v_add_u32 v{vX0}, s{S_T0}, v{tmp[4]}")
        a(f"v_add_u32 v{vX1}, s{S_T0}, v{tmp[5]}")
        nx = 2
        if kind == "H":
            vXH = V.get(); nx = 3
            a(f"s_lshl_b32 s{S_T0}, s{S_I}, 17\ns_sub_u32 s{S_T1}, s{S_T0}, 16384\ns_cmp_eq_u32 s{S_I}, 0\ns_cselect_b32 s{S_T0}, 0, s{S_T1}")
            a(f"s_bitcmp1_b32 s{S_C}, 0\ns_cselect_b64 vcc, -1, 0")
            a(f"v_cndmask_b32 v{vXH}, v{tmp[4]}, v{tmp[5]}, vcc")
            a(f"v_add_u32 v{vXH}, s{S_T0}, v{vXH}")
            a(f"s_and_b32 s{S_T0}, s{S_C}, 1\ns_lshl_b32 s{S_T0}, s{S_T0}, 10\ns_add_u32 s{S_XHFILL}, s{S_T0}, {XBASE + 16384}")
        a(f"s_lshl_b32 s{S_WFILL}, s{S_C}, 10\ns_add_u32 s{S_WFILL}, s{S_WFILL}, {hw * WSLOT}")
        a(f"s_mov_b32 s{S_WFC}, {hw}")
        a(f"s_lshl_b32 s{S_XFILL}, s{S_WAVE}, 11\ns_add_u32 s{S_XFILL}, s{S_XFILL}, {XBASE}")
        a(f"s_mov_b32 s{S_XFC}, 0")
        a(f"s_mov_b32 s{S_K3072}, {hw * 32 * 3072}\ns_mov_b32 s{S_K3584}, {hw * 32 * 3584}\ns_mov_b32 s{S_KX}, 0")

        def dma_w():
            if self.typeA:
                segs = [(SRD_QKV, vW2, S_K3072, 0), (SRD_QKV, vW2, S_K3072, 1024), (SRD_QKV, vW2, S_K3072, 2048),
                        (SRD_G, vW3584, S_K3584, 0), (SRD_U, vW3584, S_K3584, 0)]
            else:
                segs = [(SRD_G, vW3584, S_K3584, 0), (SRD_G, vW3584, S_K3584, 128), (SRD_U, vW3584, S_K3584, 0),
                        (SRD_U, vW3584, S_K3584, 128), (SRD_H, vW2, S_K3584, 0)]
            out = []
            for i, (s, v, k, off) in enumerate(segs):
                o = f" offset:{off}" if off else ""
                out.append(f"s_add_u32 m0, s{S_WFILL}, {i * 4096 - off}\ns_nop 0\n"
                           f"buffer_load_dwordx4 v{v}, s[{s}:{s+3}], s{k} offen{o} lds")
            adv = ring_adv(S_WFC, NW, 2, S_T2, WSLOT) + [f"s_add_u32 s{S_WFILL}, s{S_WFILL}, s{S_T2}",
                   f"s_add_u32 s{S_K3584}, s{S_K3584}, {64 * 3584}"]
            if self.typeA:
                adv.append(f"s_add_u32 s{S_K3072}, s{S_K3072}, {64 * 3072}")
            out.append("\n".join(adv))
            return out
        def dma_x():
            out = [f"s_mov_b32 m0, s{S_XFILL}\ns_nop 0\nbuffer_load_dwordx4 v{vX0}, s[{SRD_X}:{SRD_X+3}], s{S_KX} offen lds",
                   f"s_add_u32 m0, s{S_XFILL}, 1024\ns_nop 0\nbuffer_load_dwordx4 v{vX1}, s[{SRD_X}:{SRD_X+3}], s{S_KX} offen lds"]
            if kind == "H":
                out.append(f"s_mov_b32 m0, s{S_XHFILL}\ns_nop 0\nbuffer_load_dwordx4 v{vXH}, s[{SRD_X}:{SRD_X+3}], s{S_KX} offen lds")
            adv = ring_adv(S_XFC, NX, 1, S_T2, XSLOT) + [f"s_add_u32 s{S_XFILL}, s{S_XFILL}, s{S_T2}"]
            if kind == "H":
                adv.append(f"s_add_u32 s{S_XHFILL}, s{S_XHFILL}, s{S_T2}")
            adv += [f"s_add_u32 s{S_KX}, s{S_KX}, 128", f"s_cmp_ge_u32 s{S_KX}, 1024", f"s_cselect_b32 s{S_KX}, 0x1000000, s{S_KX}"]
            out.append("\n".join(adv))
            return out
        order = ["W", "x", "W", "x", "W"] if hw == 0 else ["x", "W", "x", "W", "x"]
        for o in order:
            for ins in (dma_w() if o == "W" else dma_x()):
                a(ins)
        base = tmp[0]; swz = tmp[1]
        a(f"v_lshrrev_b32 v{tmp[2]}, 2, v{t}")
        a(f"v_lshlrev_b32 v{base}, 7, v{tmp[2]}")
        a(f"v_lshl_add_u32 v{base}, v{g}, 10, v{base}")
        a(f"v_and_b32 v{tmp[3]}, 3, v{t}")
        a(f"v_lshl_add_u32 v{base}, v{tmp[3]}, 3, v{base}")
        a(f"v_lshrrev_b32 v{swz}, 3, v{t}")
        a(f"v_and_b32 v{tmp[3]}, 1, v{g}")
        a(f"v_lshl_add_u32 v{swz}, v{tmp[3]}, 1, v{swz}")
        waddr = []
        def mk_waddr(cb_sgpr, extra_sgpr=None):
            r = V.get()
            a(f"v_xor_b32 v{r}, s{cb_sgpr}, v{swz}")
            a(f"v_lshl_add_u32 v{r}, v{r}, 5, v{base}")
            if extra_sgpr is not None:
                a(f"v_add_u32 v{r}, s{extra_sgpr}, v{r}")
            waddr.append(r)
            return r
        if kind == "H":
            wa = mk_waddr(S_C)
            wfr = [(wa, 0), (wa, 4096), (wa, 8192)]
        elif kind == "FA":
            a(f"s_and_b32 s{S_T0}, s{S_C}, 1\ns_lshl_b32 s{S_T0}, s{S_T0}, 1\ns_add_u32 s{S_T1}, s{S_T0}, 1")
            w0 = mk_waddr(S_T0); w1 = mk_waddr(S_T1)
            wfr = [(w0, 3 * 4096), (w0, 4 * 4096), (w1, 3 * 4096), (w1, 4 * 4096)]
        else:
            a(f"s_and_b32 s{S_T0}, s{S_C}, 1\ns_lshl_b32 s{S_T0}, s{S_T0}, 1\ns_add_u32 s{S_T1}, s{S_T0}, 1")
            a(f"s_lshr_b32 s{S_T2}, s{S_C}, 1\ns_lshl_b32 s{S_T2}, s{S_T2}, 12")
            w0 = mk_waddr(S_T0, S_T2); w1 = mk_waddr(S_T1, S_T2)
            w2 = V.get(); waddr.append(w2)
            a(f"v_lshrrev_b32 v{w2}, 1, v{g}")
            a(f"v_lshlrev_b32 v{w2}, 10, v{w2}")
            a(f"v_and_b32 v{tmp[3]}, 1, v{g}")
            a(f"v_lshl_add_u32 v{w2}, v{tmp[3]}, 9, v{w2}")
            a(f"v_lshl_add_u32 v{w2}, v{tmp[2]}, 6, v{w2}")
            a(f"s_lshr_b32 s{S_T2}, s{S_C}, 1")
            a(f"v_xor_b32 v{tmp[3]}, s{S_T2}, v{tmp[3]}")
            a(f"v_lshl_add_u32 v{w2}, v{tmp[3]}, 5, v{w2}")
            a(f"v_and_b32 v{tmp[3]}, 3, v{t}")
            a(f"v_lshl_add_u32 v{w2}, v{tmp[3]}, 3, v{w2}")
            wfr = [(w0, 0), (w0, 8192), (w1, 0), (w1, 8192), (w2, 16384), (w2, 16384 + 2048)]
        second = [256 if (kind == "FB" and i >= 4) else 512 for i in range(len(wfr))]
        xb = tmp[4]
        a(f"v_lshrrev_b32 v{xb}, 1, v{t}")
        a(f"v_xor_b32 v{xb}, v{xb}, v{g}")
        a(f"v_lshlrev_b32 v{xb}, 4, v{xb}")
        a(f"v_lshl_add_u32 v{xb}, v{t}, 7, v{xb}")
        a(f"v_add_u32 v{xb}, {XBASE}, v{xb}")
        xaddr = [[], []]
        if kind == "H":
            x0 = V.get(); x1 = V.get()
            a(f"v_mov_b32 v{x0}, v{xb}\nv_xor_b32 v{x1}, 64, v{xb}")
            xaddr = [[x0], [x1]]
            xfr = [[(x0, tb * 2048) for tb in range(9)], [(x1, tb * 2048) for tb in range(9)]]
        else:
            if kind == "FB":
                a(f"s_and_b32 s{S_T0}, s{S_C}, 1\ns_lshl_b32 s{S_T0}, s{S_T0}, 1\ns_lshr_b32 s{S_T1}, s{S_C}, 1\ns_or_b32 s{S_T0}, s{S_T0}, s{S_T1}")
            else:
                a(f"s_and_b32 s{S_T0}, s{S_C}, 1\ns_lshl_b32 s{S_T0}, s{S_T0}, 1")
            a(f"s_add_u32 s{S_OB2}, s{S_T0}, {4 * th}")
            xfr = [[], []]
            for n in range(4):
                r0 = V.get(); r1 = V.get()
                a(f"s_xor_b32 s{S_T1}, s{S_OB2}, {n}\ns_lshl_b32 s{S_T1}, s{S_T1}, 11")
                a(f"v_add_u32 v{r0}, s{S_T1}, v{xb}")
                a(f"v_xor_b32 v{r1}, 64, v{r0}")
                xaddr[0].append(r0); xaddr[1].append(r1)
                xfr[0].append((r0, 0)); xfr[1].append((r1, 0))
        nxf = len(xfr[0]); nwf = len(wfr)
        ones = V.get(4, 4)
        for i in range(4):
            a(f"v_mov_b32 v{ones+i}, 0x3f803f80")
        XF = [[V.get(4, 4) for _ in range(nxf)] for _ in range(2)]
        WF = [[V.get(4, 4) for _ in range(nwf)] for _ in range(2)]
        mf = []
        if kind == "H":
            accQ = [V.get(4, 4) for _ in range(8)]
            accK = [V.get(4, 4) for _ in range(9)]
            accV = [V.get(4, 4) for _ in range(9)]
            cs = [V.get(4, 4) for _ in range(3)]
            for tb in range(9):
                if tb < 8: mf.append((accQ[tb], ("w", 0), ("x", tb)))
                mf.append((accK[tb], ("w", 1), ("x", tb)))
                mf.append((accV[tb], ("x", tb), ("w", 2)))
            mf.append((cs[0], ("w", 0), "ones")); mf.append((cs[1], ("w", 1), "ones")); mf.append((cs[2], "ones", ("w", 2)))
            accs = accQ + accK + accV + cs
            stat_slots = [8]
            self.accQ, self.accK, self.accV, self.cs = accQ, accK, accV, cs
        else:
            npair = 2 if kind == "FA" else 3
            acc = {}
            for p in range(npair):
                for n in range(4 if p < 2 else 2):
                    for gu in range(2):
                        acc[(p, n, gu)] = V.get(4, 4)
            for n in range(4):
                for p in range(npair):
                    for gu in range(2):
                        if (p, n, gu) in acc:
                            mf.append((acc[(p, n, gu)], ("w", 2 * p + gu), ("x", n)))
            cs = [V.get(4, 4) for _ in range(npair)]
            for p in range(npair):
                mf.append((cs[p], ("w", 2 * p + th), "ones"))
            accs = list(acc.values()) + cs
            stat_slots = [0, 1] if kind == "FA" else [0]
            self.acc, self.cs, self.npair = acc, cs, npair
        for r in accs:
            for i in range(4):
                a(f"v_mov_b32 v{r+i}, 0")
        ssum = [V.get() for _ in stat_slots]; ssq = [V.get() for _ in stat_slots]
        ssum2 = [V.get() for _ in stat_slots]; ssq2 = [V.get() for _ in stat_slots]
        for r in ssum + ssq + ssum2 + ssq2:
            a(f"v_mov_b32 v{r}, 0")
        self.V = V

        def reads(setn, kk):
            out = []
            for i, (r, off) in enumerate(xfr[kk]):
                o = f" offset:{off}" if off else ""
                out.append(f"ds_read_b128 {vr(XF[setn][i], 4)}, v{r}{o}")
            wr = []
            for i, (r, off) in enumerate(wfr):
                o = f" offset:{off}" if off else ""
                wr.append(f"ds_read_b64_tr_b16 {vr(WF[setn][i], 2)}, v{r}{o}")
                wr.append(f"ds_read_b64_tr_b16 {vr(WF[setn][i] + 2, 2)}, v{r} offset:{off + second[i]}")
            res = []
            while out or wr:
                if wr: res.append(wr.pop(0))
                if out: res.append(out.pop(0))
                if wr: res.append(wr.pop(0))
            return res
        def opnd(o, setn):
            if o == "ones": return vr(ones, 4)
            return vr((XF if o[0] == "x" else WF)[setn][o[1]], 4)
        def mfmas(setn):
            return [f"v_mfma_f32_16x16x32_bf16 {vr(c, 4)}, {opnd(x, setn)}, {opnd(y, setn)}, {vr(c, 4)}" for c, x, y in mf]
        def stats(setn):
            out = []
            for si, sl in enumerate(stat_slots):
                for d in range(4):
                    r = XF[setn][sl] + d
                    lo = tmp[(2 * d) % 8]; hi = tmp[(2 * d + 1) % 8]
                    out += [f"v_lshlrev_b32 v{lo}, 16, v{r}", f"v_and_b32 v{hi}, 0xffff0000, v{r}",
                            f"v_add_f32 v{ssum[si]}, v{ssum[si]}, v{lo}", f"v_add_f32 v{ssum2[si]}, v{ssum2[si]}, v{hi}",
                            f"v_fmac_f32 v{ssq[si]}, v{lo}, v{lo}", f"v_fmac_f32 v{ssq2[si]}, v{hi}, v{hi}"]
            return out
        n_pre = (10 + nx) if hw == 0 else (10 + 2 * nx)
        a(f"s_mov_b32 s{S_WRC}, 0\ns_mov_b32 s{S_XRC}, 0\ns_mov_b32 s{S_IT}, 0")
        a(f"s_waitcnt vmcnt({n_pre})\ns_barrier")
        for ins in reads(0, 0): a(ins)
        a(".p2align 3")
        a.label(f"L_{self.name}_loop")
        for step in range(2):
            if hw == 1: nv = (2 * nx + 5) if step == 0 else (10 + nx)
            else:       nv = (10 + nx) if step == 0 else (5 + nx)
            pre = ring_adv(S_WRC, NW, 1, S_DW, WSLOT)
            upd = [f"v_add_u32 v{r}, s{S_DW}, v{r}" for r in waddr]
            if step == 1:
                pre += ring_adv(S_XRC, NX, 1, S_DX, XSLOT)
                upd += [f"v_add_u32 v{r}, s{S_DX}, v{r}" for r in xaddr[0]]
            for ins in pre + upd: a(ins)
            a(f"s_waitcnt vmcnt({nv}) lgkmcnt(0)\ns_barrier")
            rd = reads(1 - step, 1 - step)
            post = []
            if step == 1:
                post = [f"v_add_u32 v{r}, s{S_DX}, v{r}" for r in xaddr[1]]
            dm = dma_w() if (step == 0) == (hw == 1) else dma_x()
            st = stats(step) + post
            M = mfmas(step)
            nM = len(M)
            slots = [[] for _ in range(nM)]
            nrd = max(1, int(nM * 0.6))
            for i, ins in enumerate(rd): slots[(i * nrd) // len(rd)].append(ins)
            for i, ins in enumerate(dm): slots[1 + (i * (nM - 2)) // len(dm)].append(ins)
            for i, ins in enumerate(st): slots[(i * nM) // len(st)].append(ins)
            for m, sl in zip(M, slots):
                a(m)
                for ins in sl: a(ins)
        a(f"s_add_u32 s{S_IT}, s{S_IT}, 1\ns_cmp_lt_u32 s{S_IT}, 8\ns_cbranch_scc1 L_{self.name}_loop")
        a("s_waitcnt vmcnt(0) lgkmcnt(0)")
        for si, sl in enumerate(stat_slots):
            s_, q_ = ssum[si], ssq[si]
            a(f"v_add_f32 v{s_}, v{s_}, v{ssum2[si]}\nv_add_f32 v{q_}, v{q_}, v{ssq2[si]}")
            for sw_ in ("v_permlane32_swap_b32", "v_permlane16_swap_b32"):
                a(f"v_mov_b32 v{tmp[0]}, v{s_}\nv_mov_b32 v{tmp[1]}, v{q_}\ns_nop 1")
                a(f"{sw_} v{tmp[0]}, v{s_}\n{sw_} v{tmp[1]}, v{q_}\ns_nop 1")
                a(f"v_add_f32 v{s_}, v{s_}, v{tmp[0]}\nv_add_f32 v{q_}, v{q_}, v{tmp[1]}")
            o4 = XF[0][0]
            a(f"v_mul_f32 v{s_}, {f2u(1/512):#x}, v{s_}")
            a(f"v_mul_f32 v{q_}, {f2u(1/512):#x}, v{q_}")
            a(f"v_fma_f32 v{q_}, -v{s_}, v{s_}, v{q_}")
            a(f"v_max_f32 v{q_}, 0, v{q_}")
            rnd_bf16(a, s_, s_)
            rnd_bf16(a, q_, q_)
            a(f"v_add_f32 v{q_}, {f2u(1e-5):#x}, v{q_}")
            rnd_bf16(a, q_, q_)
            a(f"v_sqrt_f32 v{q_}, v{q_}\ns_nop 0")
            rnd_bf16(a, o4 + 2, q_)
            a(f"v_rcp_f32 v{o4}, v{o4+2}")
            a(f"v_sub_f32 v{o4+1}, 0, v{s_}")
            a(f"v_mul_f32 v{o4+3}, v{o4}, v{o4+1}")
            if kind == "H":
                a(f"v_add_u32 v{tmp[2]}, 128, v{t}")
            else:
                a(f"s_xor_b32 s{S_T1}, s{S_OB2}, {sl}\ns_lshl_b32 s{S_T1}, s{S_T1}, 4")
                a(f"v_add_u32 v{tmp[2]}, s{S_T1}, v{t}")
            a(f"v_lshlrev_b32 v{tmp[3]}, 4, v{tmp[2]}\nv_lshlrev_b32 v{tmp[2]}, 2, v{tmp[2]}")
            a(f"v_add_u32 v{tmp[3]}, {ST4}, v{tmp[3]}\nv_add_u32 v{tmp[2]}, {STR}, v{tmp[2]}")
            a(f"s_mov_b64 exec, 0xffff")
            a(f"ds_write_b128 v{tmp[3]}, {vr(o4, 4)}")
            a(f"ds_write_b32 v{tmp[2]}, v{o4}")
            a(f"ds_write_b32 v{tmp[2]}, v{o4+3} offset:{STMR - STR}")
            a(f"s_mov_b64 exec, -1")
            a("s_waitcnt lgkmcnt(0)")
        if kind != "H":
            per = 2 * self.npair
            if kind == "FA":
                a(f"s_and_b32 s{S_T0}, s{S_C}, 1\ns_mul_i32 s{S_T0}, s{S_T0}, {per * 64}")
            else:
                a(f"s_mul_i32 s{S_T0}, s{S_C}, {per * 64}")
            csa = V.get()
            a(f"v_lshlrev_b32 v{csa}, 4, v{g}\nv_add_u32 v{csa}, s{S_T0}, v{csa}\nv_add_u32 v{csa}, {CSA}, v{csa}")
            a(f"s_mov_b32 exec_lo, 0x00010001\ns_mov_b32 exec_hi, 0x00010001")
            for p in range(self.npair):
                a(f"ds_write_b128 v{csa}, {vr(cs[p], 4)} offset:{(2 * p + th) * 64}")
            a(f"s_mov_b64 exec, -1")
            self.csa = csa
        a("s_waitcnt lgkmcnt(0)\ns_barrier")
        self.XF, self.WF, self.ones = XF, WF, ones
        if kind == "H": self.epi_H()
        else: self.epi_F()
        a("s_endpgm")
        return V.hi

    def epi_F(self):
        a = self.a; kind = self.kind; th = self.th
        t, g, lane, tmp = self.t, self.g, self.lane, self.tmp
        XF, WF = self.XF, self.WF
        cso = [WF[0][p] for p in range(self.npair)]
        for p in range(self.npair):
            a(f"ds_read_b128 {vr(cso[p], 4)}, v{self.csa} offset:{(2 * p + 1 - th) * 64}")
        csG = self.cs if th == 0 else cso
        csU = cso if th == 0 else self.cs
        st = [XF[0][n] for n in range(4)]
        for n in range(4):
            a(f"s_xor_b32 s{S_T1}, s{S_OB2}, {n}\ns_lshl_b32 s{S_T1}, s{S_T1}, 8\ns_add_u32 s{S_T1}, s{S_T1}, {ST4}")
            a(f"v_lshlrev_b32 v{tmp[0]}, 4, v{t}\nv_add_u32 v{tmp[0]}, s{S_T1}, v{tmp[0]}")
            a(f"ds_read_b128 {vr(st[n], 4)}, v{tmp[0]}")
        vo = [XF[1][0], XF[1][0] + 1]
        a(f"v_lshrrev_b32 v{tmp[1]}, 5, v{lane}")
        a(f"v_xor_b32 v{tmp[1]}, s{S_OB2}, v{tmp[1]}")
        a(f"v_and_b32 v{tmp[1]}, 3, v{tmp[1]}")
        a(f"v_lshlrev_b32 v{tmp[1]}, 10, v{tmp[1]}")
        a(f"v_and_b32 v{tmp[2]}, 31, v{lane}")
        a(f"v_lshl_add_u32 v{vo[0]}, v{tmp[2]}, 4, v{tmp[1]}")
        a(f"v_xor_b32 v{vo[1]}, 2048, v{vo[0]}")
        a(f"s_lshr_b32 s{S_T0}, s{S_OB2}, 2\ns_lshl_b32 s{S_T1}, s{S_I}, 1\ns_add_u32 s{S_T0}, s{S_T0}, s{S_T1}\ns_mul_i32 s{S_OB}, s{S_T0}, {A2_TILE}")
        a(f"s_add_u32 s{S_OB}, s{S_OB}, {16 * 4096}")
        a("s_waitcnt lgkmcnt(0)")
        for n in range(4):
            a(f"v_mul_f32 v{st[n]}, {f2u(-LOG2E):#x}, v{st[n]}\nv_mul_f32 v{st[n]+3}, {f2u(-LOG2E):#x}, v{st[n]+3}")
        pk = [WF[1][0], WF[1][1]]
        k = 0
        for p in range(self.npair):
            if p < 2:
                if kind == "FA":
                    a(f"s_and_b32 s{S_T0}, s{S_C}, 1")
                else:
                    a(f"s_mov_b32 s{S_T0}, s{S_C}")
                a(f"s_lshr_b32 s{S_T1}, s{S_FO}, 6\ns_add_u32 s{S_T0}, s{S_T0}, s{S_T1}\ns_lshl_b32 s{S_T0}, s{S_T0}, 12")
                a(f"s_add_u32 s{S_T0}, s{S_T0}, {p * 512}")
            else:
                a(f"s_lshr_b32 s{S_T0}, s{S_HO}, 6\ns_lshl_b32 s{S_T0}, s{S_T0}, 12\ns_lshr_b32 s{S_T1}, s{S_C}, 1\ns_lshl_b32 s{S_T1}, s{S_T1}, 9\ns_add_u32 s{S_T0}, s{S_T0}, s{S_T1}")
            a(f"s_add_u32 s{S_T0}, s{S_T0}, s{S_OB}")
            for u in range(2 if p < 2 else 1):
                P = pk[k & 1]; k += 1
                regs = []
                for h_ in range(2):
                    n = 2 * u + h_
                    G = self.acc[(p, n, 0)]; U = self.acc[(p, n, 1)]
                    regs.append((G, U, st[n]))
                for (G, U, S) in regs:
                    for r in range(4):
                        a(f"v_mul_f32 v{tmp[r]}, v{csG[p]+r}, v{S+3}")
                    for r in range(4):
                        a(f"v_fma_f32 v{G+r}, v{G+r}, v{S}, v{tmp[r]}")
                for (G, U, S) in regs:
                    for r in range(4):
                        a(f"v_exp_f32 v{G+r}, v{G+r}")
                for (G, U, S) in regs:
                    for r in range(4):
                        a(f"v_fma_f32 v{U+r}, v{csU[p]+r}, v{S+1}, v{U+r}")
                for (G, U, S) in regs:
                    for r in range(4):
                        a(f"v_fma_f32 v{G+r}, v{G+r}, v{S+2}, v{S+2}")
                for (G, U, S) in regs:
                    for r in range(4):
                        a(f"v_rcp_f32 v{G+r}, v{G+r}")
                a("s_nop 0")
                for (G, U, S) in regs:
                    for r in range(4):
                        a(f"v_mul_f32 v{U+r}, v{U+r}, v{G+r}")
                for h_, (G, U, S) in enumerate(regs):
                    a(f"v_cvt_pk_bf16_f32 v{P+2*h_}, v{U}, v{U+1}\nv_cvt_pk_bf16_f32 v{P+2*h_+1}, v{U+2}, v{U+3}")
                a("s_nop 1")
                a(f"v_permlane32_swap_b32 v{P}, v{P+2}\nv_permlane32_swap_b32 v{P+1}, v{P+3}")
                a(f"buffer_store_dwordx4 {vr(P, 4)}, v{vo[u]}, s[{SRD_WS}:{SRD_WS+3}], s{S_T0} offen")

    def epi_H(self):
        a = self.a
        t, g, lane, tmp = self.t, self.g, self.lane, self.tmp
        XF, WF, ones = self.XF, self.WF, self.ones
        accQ, accK, accV, cs = self.accQ, self.accK, self.accV, self.cs
        F0 = XF[0][0]
        assert XF[1][8] == F0 + 68
        st = [F0 + 4 * i for i in range(9)]
        a(f"v_lshlrev_b32 v{tmp[0]}, 4, v{t}\nv_add_u32 v{tmp[0]}, {ST4}, v{tmp[0]}")
        for tb in range(9):
            a(f"ds_read_b128 {vr(st[tb], 4)}, v{tmp[0]} offset:{tb * 256}")
        a(f"v_lshlrev_b32 v{tmp[1]}, 4, v{g}\nv_add_u32 v{tmp[1]}, {STR}, v{tmp[1]}")
        mPar, mB0, mB1 = S_M0, S_M0 + 2, S_M0 + 4
        par = tmp[2]
        a(f"v_and_b32 v{par}, 1, v{t}")
        a(f"v_cmp_eq_u32 s[{mPar}:{mPar+1}], 1, v{par}")
        a(f"v_lshlrev_b32 v{tmp[3]}, 2, v{g}\nv_add_u32 v{tmp[3]}, v{tmp[3]}, v{par}")
        a(f"v_cmp_ge_u32 s[{mB0}:{mB0+1}], v{t}, v{tmp[3]}")
        a(f"v_add_u32 v{tmp[3]}, 2, v{tmp[3]}")
        a(f"v_cmp_ge_u32 s[{mB1}:{mB1+1}], v{t}, v{tmp[3]}")
        MK = WF[0][0]
        a(f"v_mov_b32 v{tmp[4]}, 0xffff\nv_mov_b32 v{tmp[5]}, 0xffff0000")
        a(f"v_cndmask_b32 v{tmp[4]}, v{tmp[4]}, v{tmp[5]}, s[{mPar}:{mPar+1}]")
        a(f"v_cndmask_b32 v{MK}, v{tmp[4]}, 0, s[{mB0}:{mB0+1}]")
        a(f"v_cndmask_b32 v{MK+1}, v{tmp[4]}, 0, s[{mB1}:{mB1+1}]")
        a(f"v_cndmask_b32 v{MK+2}, 0, v{tmp[4]}, s[{mB0}:{mB0+1}]")
        a(f"v_cndmask_b32 v{MK+3}, 0, v{tmp[4]}, s[{mB1}:{mB1+1}]")
        a(f"s_cmp_eq_u32 s{S_I}, 0\ns_cselect_b32 s{S_BIAS}, {f2u(-1e30):#x}, 0")
        a("s_waitcnt lgkmcnt(0)")
        for tb in range(9):
            for (acc, c) in ([(accQ[tb], cs[0])] if tb < 8 else []) + [(accK[tb], cs[1])]:
                for r in range(4):
                    a(f"v_mul_f32 v{tmp[4+r]}, v{c+r}, v{st[tb]+3}")
                for r in range(4):
                    a(f"v_fma_f32 v{acc+r}, v{acc+r}, v{st[tb]}, v{tmp[4+r]}")
                a(f"v_cvt_pk_bf16_f32 v{acc}, v{acc}, v{acc+1}\nv_cvt_pk_bf16_f32 v{acc+1}, v{acc+2}, v{acc+3}")
        for tb in range(9):
            a(f"ds_read_b128 {vr(F0 + 8 * tb, 4)}, v{tmp[1]} offset:{tb * 64}")
            a(f"ds_read_b128 {vr(F0 + 8 * tb + 4, 4)}, v{tmp[1]} offset:{tb * 64 + STMR - STR}")
        VP = WF[0][1]
        assert WF[1][2] + 4 - VP >= 18
        a("s_waitcnt lgkmcnt(0)")
        for tb in range(9):
            pos = tb + 1 if tb < 8 else 0
            acc = accV[tb]; R = F0 + 8 * tb
            for r in range(4):
                a(f"v_mul_f32 v{R+4+r}, v{cs[2]}, v{R+4+r}")
            for r in range(4):
                a(f"v_fma_f32 v{acc+r}, v{acc+r}, v{R+r}, v{R+4+r}")
            a(f"v_cvt_pk_bf16_f32 v{VP+2*pos}, v{acc}, v{acc+1}\nv_cvt_pk_bf16_f32 v{VP+2*pos+1}, v{acc+2}, v{acc+3}")
        a("s_nop 1")
        for tb in range(8):
            prev = accK[tb - 1] if tb > 0 else accK[8]
            S = F0 + 8 * tb
            a(f"v_mfma_f32_16x16x16_bf16 {vr(S, 4)}, {vr(prev, 2)}, {vr(accQ[tb], 2)}, 0")
            a(f"v_mfma_f32_16x16x16_bf16 {vr(S + 4, 4)}, {vr(accK[tb], 2)}, {vr(accQ[tb], 2)}, 0")
        a("s_nop 7")
        for tb in range(8):
            S = F0 + 8 * tb
            a(f"v_cndmask_b32 v{S}, v{S}, v{S+1}, s[{mPar}:{mPar+1}]")
            a(f"v_cndmask_b32 v{S+2}, v{S+2}, v{S+3}, s[{mPar}:{mPar+1}]")
            a(f"v_cndmask_b32 v{S+4}, v{S+4}, v{S+5}, s[{mPar}:{mPar+1}]")
            a(f"v_cndmask_b32 v{S+6}, v{S+6}, v{S+7}, s[{mPar}:{mPar+1}]")
            if tb == 0:
                a(f"v_add_f32 v{S}, s{S_BIAS}, v{S}\nv_add_f32 v{S+2}, s{S_BIAS}, v{S+2}")
            a(f"v_cndmask_b32 v{S}, v{S}, v{S+4}, s[{mB0}:{mB0+1}]")
            a(f"v_cndmask_b32 v{S+1}, v{S+2}, v{S+6}, s[{mB1}:{mB1+1}]")
            a(f"v_max_f32 v{S+2}, v{S}, v{S+1}")
            a(f"v_max_f32 v{S+3}, v{S}, v{S+1}")
        for sw_ in ("v_permlane32_swap_b32", "v_permlane16_swap_b32"):
            a("s_nop 1")
            for tb in range(8):
                S = F0 + 8 * tb
                a(f"{sw_} v{S+2}, v{S+3}")
            a("s_nop 1")
            for tb in range(8):
                S = F0 + 8 * tb
                a(f"v_max_f32 v{S+4}, v{S+2}, v{S+3}")
                a(f"v_max_f32 v{S+3}, v{S+2}, v{S+3}")
                a(f"v_mov_b32 v{S+2}, v{S+4}")
        c = f2u(0.25 * LOG2E)
        a(f"s_mov_b32 s{S_T0}, {c:#x}")
        for tb in range(8):
            S = F0 + 8 * tb
            a(f"v_sub_f32 v{S}, v{S}, v{S+2}\nv_sub_f32 v{S+1}, v{S+1}, v{S+2}")
            a(f"v_mul_f32 v{S}, s{S_T0}, v{S}\nv_mul_f32 v{S+1}, s{S_T0}, v{S+1}")
        for tb in range(8):
            S = F0 + 8 * tb
            a(f"v_exp_f32 v{S}, v{S}\nv_exp_f32 v{S+1}, v{S+1}")
        a("s_nop 0")
        for tb in range(8):
            S = F0 + 8 * tb
            a(f"v_cvt_pk_bf16_f32 v{S}, v{S}, v{S}\nv_cvt_pk_bf16_f32 v{S+1}, v{S+1}, v{S+1}")
            a(f"v_and_b32 v{S+4}, v{S}, v{MK}\nv_and_b32 v{S+5}, v{S+1}, v{MK+1}")
            a(f"v_and_b32 v{S+6}, v{S}, v{MK+2}\nv_and_b32 v{S+7}, v{S+1}, v{MK+3}")
        a("s_nop 1")
        for tb in range(8):
            S = F0 + 8 * tb
            a(f"v_mfma_f32_16x16x32_bf16 {vr(accV[tb], 4)}, {vr(VP + 2 * tb, 4)}, {vr(S + 4, 4)}, 0")
            a(f"v_mfma_f32_16x16x32_bf16 {vr(accK[tb], 4)}, {vr(ones, 4)}, {vr(S + 4, 4)}, 0")
        vo = tmp[0]
        a(f"v_lshrrev_b32 v{tmp[1]}, 5, v{lane}\nv_lshlrev_b32 v{tmp[1]}, 10, v{tmp[1]}")
        a(f"v_and_b32 v{tmp[2]}, 31, v{lane}")
        a(f"v_lshl_add_u32 v{vo}, v{tmp[2]}, 4, v{tmp[1]}")
        a(f"s_lshl_b32 s{S_T0}, s{S_I}, 1\ns_mul_i32 s{S_OB}, s{S_T0}, {A2_TILE}")
        a(f"s_lshl_b32 s{S_T0}, s{S_J}, 1\ns_lshr_b32 s{S_T1}, s{S_C}, 1\ns_add_u32 s{S_T0}, s{S_T0}, s{S_T1}\ns_lshl_b32 s{S_T0}, s{S_T0}, 12")
        a(f"s_and_b32 s{S_T1}, s{S_C}, 1\ns_lshl_b32 s{S_T1}, s{S_T1}, 9\ns_add_u32 s{S_T0}, s{S_T0}, s{S_T1}\ns_add_u32 s{S_OB}, s{S_OB}, s{S_T0}")
        a(f"s_add_u32 s{S_OB2}, s{S_OB}, {A2_TILE}")
        a("s_nop 4")
        for tb in range(8):
            a(f"v_rcp_f32 v{accK[tb]}, v{accK[tb]}")
        a("s_nop 0")
        for u in range(4):
            P = F0 + 8 * u
            for h_ in range(2):
                tb = 2 * u + h_
                O = accV[tb]
                for r in range(4):
                    a(f"v_mul_f32 v{O+r}, v{O+r}, v{accK[tb]}")
                a(f"v_cvt_pk_bf16_f32 v{P+2*h_}, v{O}, v{O+1}\nv_cvt_pk_bf16_f32 v{P+2*h_+1}, v{O+2}, v{O+3}")
            a("s_nop 1")
            a(f"v_permlane32_swap_b32 v{P}, v{P+2}\nv_permlane32_swap_b32 v{P+1}, v{P+3}")
            so = S_OB if u < 2 else S_OB2
            o = " offset:2048" if (u & 1) else ""
            a(f"buffer_store_dwordx4 {vr(P, 4)}, v{vo}, s[{SRD_WS}:{SRD_WS+3}], s{so} offen{o}")


def gen_k1(a):
    k = "p1_kernel"
    a(f".globl {k}\n.p2align 8\n.type {k},@function\n{k}:")
    a("s_cmp_ge_u32 s2, 256\ns_cbranch_scc1 L_p1_done")
    a(f"s_load_dwordx16 s[{S_PTR}:{S_PTR+15}], s[0:1], 0")
    a(f"s_load_dwordx4 s[{S_PTR+16}:{S_PTR+19}], s[0:1], 64")
    a(f"v_lshrrev_b32 v1, 6, v0\ns_nop 0\nv_readfirstlane_b32 s{S_WAVE}, v1")
    a(f"s_and_b32 s{S_T0}, s2, 1\ns_lshl_b32 s{S_T0}, s{S_T0}, 3\ns_bfe_u32 s{S_T1}, s2, 0x30003\ns_add_u32 s{S_I}, s{S_T0}, s{S_T1}")
    a(f"s_and_b32 s{S_T0}, s2, 6\ns_bfe_u32 s{S_T1}, s2, 0x10006\ns_add_u32 s{S_J}, s{S_T0}, s{S_T1}")
    a(f"s_and_b32 s{S_C}, s{S_WAVE}, 3")
    a("s_waitcnt lgkmcnt(0)")
    srd(a, SRD_X, S_PTR + 0, 2048 * 1024)
    srd(a, SRD_QKV, S_PTR + 2, 512 * 3072)
    srd(a, SRD_G, S_PTR + 8, 512 * 3584)
    srd(a, SRD_U, S_PTR + 10, 512 * 3584)
    srd(a, SRD_WS, S_PTR + 18, 32 * A2_TILE)
    a(f"s_cmp_lt_u32 s{S_C}, 2")
    a(f"s_cselect_b32 s{SRD_H}, s{SRD_G}, s{SRD_U}\ns_cselect_b32 s{SRD_H+1}, s{SRD_G+1}, s{SRD_U+1}")
    a(f"s_mov_b32 s{SRD_H+2}, {512 * 3584}\ns_mov_b32 s{SRD_H+3}, 0x20000")
    a(f"s_bitcmp1_b32 s2, 7\ns_cbranch_scc1 L_typeB")
    a(f"s_lshl_b32 s{S_FO}, s{S_J}, 7\ns_mov_b32 s{S_HO}, 0")
    a(f"s_cmp_lt_u32 s{S_WAVE}, 4\ns_cbranch_scc1 L_H0")
    a(f"s_cmp_lt_u32 s{S_WAVE}, 6\ns_cbranch_scc1 L_FA0\ns_branch L_FA1")
    a.label("L_typeB")
    a(f"s_mul_i32 s{S_T0}, s{S_J}, 320\ns_add_u32 s{S_T0}, s{S_T0}, 1024")
    a(f"s_bitcmp1_b32 s{S_J}, 0\ns_cselect_b32 s{S_T1}, 64, 0\ns_cselect_b32 s{S_T2}, 0, 256")
    a(f"s_add_u32 s{S_FO}, s{S_T0}, s{S_T1}\ns_add_u32 s{S_HO}, s{S_T0}, s{S_T2}")
    a(f"s_cmp_lt_u32 s{S_WAVE}, 4\ns_cbranch_scc1 L_FB0\ns_branch L_FB1")
    a.label("L_p1_done")
    a("s_endpgm")
    hi = 0
    for kind, th in (("H", 0), ("FA", 0), ("FA", 1), ("FB", 0), ("FB", 1)):
        h = Prog(a, kind, th).build()
        print(f"prog {kind}{th}: vgprs {h}", file=sys.stderr)
        hi = max(hi, h)
    return k, hi


def desc(a, name, vgpr):
    acc = min(256, (vgpr + 3) // 4 * 4)
    a(f""".section .rodata,"a"
.p2align 6
.amdhsa_kernel {name}
  .amdhsa_next_free_vgpr {vgpr}
  .amdhsa_next_free_sgpr 102
  .amdhsa_accum_offset {acc}
  .amdhsa_group_segment_fixed_size 0
  .amdhsa_kernarg_size 80
  .amdhsa_user_sgpr_count 2
  .amdhsa_user_sgpr_kernarg_segment_ptr 1
  .amdhsa_system_sgpr_workgroup_id_x 1
.end_amdhsa_kernel
.text""")


def main(out):
    from gen2 import gen_k2
    a = Asm()
    a(f"; @launch kernel=p1_kernel grid=(256,1,1) block=(512,1,1) lds={LDS_TOTAL}")
    a(f"; @launch kernel=p2_kernel grid=(256,1,1) block=(512,1,1) lds={LDS_TOTAL}")
    a('.amdgcn_target "amdgcn-amd-amdhsa--gfx950"\n.text')
    k1, h1 = gen_k1(a)
    k2, h2 = gen_k2(a)
    desc(a, k1, 256)
    desc(a, k2, 256)
    open(out, "w").write(a.text())

if __name__ == "__main__":
    main(sys.argv[1] if len(sys.argv) > 1 else f"cdna_kernels/{NAME}.s")
```
